```python
import torch

def _softmax(x, axis=-1):
    return torch.softmax(x, dim=axis)

def _gelu(x):
    return torch.nn.functional.gelu(x, approximate='tanh')

def _silu(x):
    return torch.nn.functional.silu(x)

def _sigmoid(x):
    return torch.sigmoid(x)

def _layernorm(x, axis=-1, eps=1e-05):
    m = x.mean(dim=axis, keepdim=True)
    v = x.var(dim=axis, keepdim=True, unbiased=False)
    return (x - m) / torch.sqrt(v + eps)

def _scatter_add(tgt, idx, src, axis=0):
    return tgt.clone().index_add_(axis, idx, src)

def _segment_sum(src, seg, n):
    out = torch.zeros((n,) + src.shape[1:], dtype=src.dtype)
    return out.index_add_(0, seg, src)

def _pad(x, pw):
    flat = tuple((v for pair in reversed(pw) for v in pair))
    return torch.nn.functional.pad(x, flat)
kernel_name = 'adaLN_cond__sliding_block_cached__swiglu_ffn__decode'

def setup_inputs():

    _w = lambda a: (lambda t: t.to(torch.bfloat16) if t.is_floating_point() else t)(torch.as_tensor(a))

    def _A_setup():
        B, Sq, D = (2, 1, 448)
        Hq, Hkv, Sk, Dh = (16, 8, 32768, 256)
        assert Hq % Hkv == 0, (Hq, Hkv)
        return {'x': _w((lambda *s: torch.randn(*s, dtype=torch.bfloat16) * 0.05)(B, Sq, D)), 'k_cache': _w((lambda *s: torch.randn(*s, dtype=torch.bfloat16) * 3.2)(B, Hkv, Sk, Dh)), 'v_cache': _w((lambda *s: torch.randn(*s, dtype=torch.bfloat16) * 0.4)(B, Hkv, Sk, Dh)), 'wq': _w((lambda *s: torch.randn(*s, dtype=torch.bfloat16) * 3.2)(D, Hq * Dh) * D ** (-0.5)), 'wo': _w((lambda *s: torch.randn(*s, dtype=torch.bfloat16) * 0.4)(Hq * Dh, D) * (Hq * Dh) ** (-0.5))}
    _A_in = _A_setup()

    def _B_setup():
        B, S, D, F = (2, 1, 448, 1792)
        return {'x': _w((lambda *s: torch.randn(*s, dtype=torch.bfloat16) * 0.05)(B, S, D)), 'w_gate': _w((lambda *s: torch.randn(*s, dtype=torch.bfloat16) * 0.05)(D, F)), 'w_up': _w((lambda *s: torch.randn(*s, dtype=torch.bfloat16) * 0.05)(D, F)), 'w_down': _w((lambda *s: torch.randn(*s, dtype=torch.bfloat16) * 0.05)(F, D))}
    _B_in = _B_setup()
    return {'A_x': _A_in['x'], 'A_k_cache': _A_in['k_cache'], 'A_v_cache': _A_in['v_cache'], 'A_wq': _A_in['wq'], 'A_wo': _A_in['wo'], 'B_x': _B_in['x'], 'B_w_gate': _B_in['w_gate'], 'B_w_up': _B_in['w_up'], 'B_w_down': _B_in['w_down'], 'c': _w((lambda *s: torch.randn(*s, dtype=torch.bfloat16) * 0.1)(2, 448) * 8.0), 'w_mod': _w((lambda *s: torch.randn(*s, dtype=torch.bfloat16) * 0.1)(448, 6 * 448) * 448 ** (-0.5) * 8.0)}

def reference(A_x, A_k_cache, A_v_cache, A_wq, A_wo, B_x, B_w_gate, B_w_up, B_w_down, c, w_mod):

    def _A_ref(x, k_cache, v_cache, wq, wo):
        B, Sq, D = x.shape
        Hq, Dh = (16, 256)
        Hkv, Sk = (k_cache.shape[1], k_cache.shape[2])
        W = min(4096, max(256, Sk // 4))
        rep = Hq // Hkv
        q = (lambda x, *d: x.permute(*d))((x @ wq).reshape(B, Sq, Hq, Dh), 0, 2, 1, 3)
        k = (lambda x, n, axis: torch.repeat_interleave(x, n, dim=axis))(k_cache[:, :, Sk - W:, :], rep, axis=1)
        v = (lambda x, n, axis: torch.repeat_interleave(x, n, dim=axis))(v_cache[:, :, Sk - W:, :], rep, axis=1)
        scores = torch.einsum('bhqd,bhkd->bhqk', q, k) * Dh ** (-0.5)
        p = _softmax(scores, axis=-1)
        o = torch.einsum('bhqk,bhkd->bhqd', p, v)
        return (lambda x, *d: x.permute(*d))(o, 0, 2, 1, 3).reshape(B, Sq, Hq * Dh) @ wo

    def _B_ref(x, w_gate, w_up, w_down):
        g = _silu(x @ w_gate)
        u = x @ w_up
        return g * u @ w_down
    x = A_x
    mod = (_silu(c) @ w_mod).reshape(c.shape[0], 6, 1, -1)
    sa, ca, ga, sb, cb, gb = (mod[:, 0].clone(), mod[:, 1].clone(), mod[:, 2].clone(), mod[:, 3].clone(), mod[:, 4].clone(), mod[:, 5].clone())
    h = _layernorm(x, axis=-1) * (1 + ca) + sa
    x = x + ga * _A_ref(h, A_k_cache, A_v_cache, A_wq, A_wo)
    h = _layernorm(x, axis=-1) * (1 + cb) + sb
    x = x + gb * _B_ref(h, B_w_gate, B_w_up, B_w_down)
    return x
```

```python
KNAME = 'adaLN_cond__sliding_block_cached__swiglu_ffn__decode_kernel'
class Asm:
    def __init__(self):
        self.lines = []
        self.uid = 0
    def __call__(self, s):
        for l in s.split('\n'):
            l = l.strip()
            if l: self.lines.append(('' if l.endswith(':') else '    ') + l)
    def label(self, base):
        self.uid += 1
        return f'L_{base}_{self.uid}'
    def text(self): return '\n'.join(self.lines) + '\n'

def wrap(body, grid, block, lds, nvgpr, accum, nsgpr=102, header=''):
    return f'''{header}; @launch grid=({grid},1,1) block=({block},1,1) lds={lds}
.amdgcn_target "amdgcn-amd-amdhsa--gfx950"
.text
.globl {KNAME}
.p2align 8
.type {KNAME},@function
{KNAME}:
{body}
.section .rodata,"a"
.p2align 6
.amdhsa_kernel {KNAME}
  .amdhsa_next_free_vgpr {nvgpr}
  .amdhsa_next_free_sgpr {nsgpr}
  .amdhsa_accum_offset {accum}
  .amdhsa_group_segment_fixed_size 0
  .amdhsa_kernarg_size 112
  .amdhsa_user_sgpr_count 2
  .amdhsa_user_sgpr_kernarg_segment_ptr 1
  .amdhsa_system_sgpr_workgroup_id_x 1
  .amdhsa_float_denorm_mode_32 3
  .amdhsa_float_denorm_mode_16_64 3
.end_amdhsa_kernel
'''
```

```python
import re
TRANS = ('v_exp_f32', 'v_log_f32', 'v_rcp_f32', 'v_rsq_f32', 'v_sqrt_f32', 'v_sin_f32', 'v_cos_f32')

def regs(tok):
    tok = tok.strip()
    tok = tok.lstrip('-')
    m = re.fullmatch(r'abs\((.*)\)', tok)
    if m: tok = m.group(1)
    tok = tok.strip('|')
    m = re.fullmatch(r'([vsa])(\d+)', tok)
    if m: return {(m.group(1), int(m.group(2)))}
    m = re.fullmatch(r'([vsa])\[(\d+):(\d+)\]', tok)
    if m: return {(m.group(1), i) for i in range(int(m.group(2)), int(m.group(3)) + 1)}
    if tok == 'vcc': return {('s', 'vcc')}
    if tok == 'm0': return {('s', 'm0')}
    if tok == 'exec': return {('s', 'exec')}
    return set()

class I:
    def __init__(self, line):
        self.line = line
        s = line.split(';')[0].strip()
        self.label = s.endswith(':')
        self.mn = s.split()[0] if s else ''
        rest = s[len(self.mn):].strip()
        parts = [p.strip() for p in rest.split(',')] if rest else []
        ops = []
        self.mods = ''
        for k, p in enumerate(parts):
            t = p.split()
            if not t: continue
            ops.append(t[0])
            if len(t) > 1: self.mods += ' ' + ' '.join(t[1:])
        self.ops = ops
        mn = self.mn
        self.mfma = mn.startswith('v_mfma')
        self.valu = mn.startswith('v_') and not self.mfma
        self.salu = mn.startswith('s_')
        self.ds = mn.startswith('ds_')
        self.vmem = mn.startswith(('buffer_', 'global_'))
        self.dpp = '_dpp' in mn or 'row_' in s or 'quad_perm' in s
        self.perml = mn.startswith('v_permlane')
        self.trans = mn.replace('_e32', '').replace('_e64', '') in TRANS
        self.lds_dma = self.vmem and (' lds' in s or '_lds_' in mn)
        R = [regs(o) for o in ops]
        w = set(); r = set()
        if self.mfma:
            w = R[0]; self.A = R[1]; self.B = R[2]; self.C = R[3] if len(R) > 3 else set(); r = self.A | self.B | self.C
            self.passes = 8 if '32x32' in mn else (2 if '4x4' in mn else 4)
        elif self.valu:
            if mn.startswith('v_cmp'):
                w = R[0]; r = set().union(*R[1:])
            elif self.perml:
                w = R[0] | R[1]; r = R[0] | R[1]
            elif '_co_' in mn:
                w = R[0] | R[1]; r = set().union(*R[2:])
            else:
                w = R[0] if R else set(); r = set().union(*R[1:]) if len(R) > 1 else set()
                if mn.startswith(('v_fmac', 'v_dot2c', 'v_writelane')) or self.dpp: r = r | w
        elif self.ds:
            if mn.startswith(('ds_read', 'ds_bpermute', 'ds_permute', 'ds_swizzle')):
                w = R[0]; r = set().union(*R[1:])
            else:
                r = set().union(*R)
        elif self.vmem:
            if 'load' in mn and not self.lds_dma:
                w = R[0]; r = set().union(*R[1:])
            else:
                r = set().union(*R) if R else set()
            self.store_data = set()
            if 'store' in mn and ('x4' in mn or 'x3' in mn):
                self.store_data = R[0] if mn.startswith('buffer_') else R[1]
        elif self.salu:
            if mn.startswith(('s_cmp', 's_cbranch', 's_branch', 's_waitcnt', 's_barrier', 's_nop', 's_setprio', 's_sleep', 's_endpgm', 's_bitcmp')):
                r = set().union(*R) if R else set()
            else:
                w = R[0] if R else set(); r = set().union(*R[1:]) if len(R) > 1 else set()
        self.w = w; self.r = r
        self.states = 1
        if mn == 's_nop': self.states = int(ops[0]) + 1
        if self.label or not mn or mn.startswith('.'): self.states = 0

def need(p, c):
    n = 0
    vw = {x for x in p.w if x[0] in 'va'}
    sw = {x for x in p.w if x[0] == 's'}
    if p.valu:
        if c.mfma and (vw & c.r): n = max(n, 2)
        if c.valu and (c.dpp or c.perml) and (vw & c.r): n = max(n, 2)
        if c.mn.startswith(('v_readlane', 'v_readfirstlane')) and (vw & c.r): n = max(n, 1)
        if p.trans and (c.valu or c.mfma) and (vw & c.r): n = max(n, 1)
        if sw:
            if c.valu and (sw & c.r): n = max(n, 4 if c.mn.startswith(('v_readlane', 'v_writelane')) else 2)
            if c.vmem and (sw & c.r): n = max(n, 5)
    if p.mfma:
        big = {2: 5, 4: 8, 8: 12}[p.passes]
        if c.mfma:
            if p.w & (c.A | c.B): n = max(n, big)
            if p.w & c.C:
                if p.w == c.C and p.passes == c.passes: n = max(n, 2 if p.passes == 2 else 0)
                else: n = max(n, big - 2 if p.passes > 2 else 4)
            elif p.w & c.w: n = max(n, big)
        elif c.valu or c.ds or c.vmem:
            if p.w & (c.r | c.w): n = max(n, big)
            if c.valu and (p.C & c.w): n = max(n, {2: 1, 4: 3, 8: 7}[p.passes])
    if p.salu and ('s', 'm0') in p.w and c.lds_dma: n = max(n, 1)
    if p.vmem and getattr(p, 'store_data', None):
        if (c.valu or c.mfma) and (p.store_data & c.w): n = max(n, 2)
        elif p.store_data & c.w: n = max(n, 1)
    return n

def fix(lines):
    out = []
    added = 0
    for line in lines:
        c = I(line)
        if c.states:
            dist = 0; pad = 0
            for p in reversed(out):
                if dist >= 12: break
                if p.mn in ('s_branch', 's_endpgm'): break
                if p.states:
                    pad = max(pad, need(p, c) - dist)
                    dist += p.states
            if pad > 0:
                out.append(I(f'    s_nop {pad-1}')); added += 1
        out.append(c)
    return [i.line for i in out], added
```

```python
import sys, struct, math
from gen_common import *
from hazard import fix

def f2u(x): return struct.unpack('<I', struct.pack('<f', x))[0]
def hx(x): return hex(x & 0xffffffff)

WS_E = 0; WS_H = 0x1000; WS_MR = 0x2000; WS_Q = 0x8000; WS_B = 0xC000; WS_ST = 0x14000
WS_A = 0x20000; WS_C = 0x60000; WS_SIZE = WS_C + 112 * 1792
L_ST0 = 131072; L_ST1 = L_ST0 + 14336; L_SC = L_ST1 + 14336; L_H = L_SC + 2048
L_Q = L_ST1; L_P = L_ST1 + 1024; L_M = L_ST1 + 2304; L_L = L_M + 128
L_W = L_ST0; L_RED = L_ST0 + 1024; L_H2 = L_ST0 + 2048
PSTR = 528
GOLD = 0x9E3779B9
SPIN = 1 << 16
SC_EXP = 0.0625 * math.log2(math.e)

sW, sX, sY = 's3', 's4', 's5'
pX, pK, pV, pWQ, pWO, pG, pU, pD, pC, pM, pO, pWS = 8, 10, 12, 14, 16, 20, 22, 24, 26, 28, 30, 32
SRD_WS, SRD1, SRD2, SRD3 = 36, 40, 44, 48
vL, vS, vN = 'v0', 'v1', 'v2'

def v(i, n=1): return f'v{i}' if n == 1 else f'v[{i}:{i+n-1}]'
def s(i, n=1): return f's{i}' if n == 1 else f's[{i}:{i+n-1}]'

def gen(stamps=False, rnd_tail=True, qk_pos=4, prefetch=True):
    a = Asm()
    nst = [0]
    def stamp(i):
        if stamps: a(f's_memrealtime s[{72+2*i}:{73+2*i}]')
    def srd(r, ptr, nbytes, off=None):
        if off is None:
            a(f's_mov_b32 s{r}, s{ptr}\ns_mov_b32 s{r+1}, s{ptr+1}')
        else:
            a(f's_add_u32 s{r}, s{ptr}, {off}\ns_addc_u32 s{r+1}, s{ptr+1}, 0')
        a(f's_mov_b32 s{r+2}, {nbytes}\ns_mov_b32 s{r+3}, 0x20000')
    def mask64(r, m):
        a(f's_mov_b32 s{r}, {hx(m)}\ns_mov_b32 s{r+1}, {hx(m >> 32)}')
    def rnd2(x, y, t):
        a(f'v_cvt_pk_bf16_f32 {t}, {x}, {y}\nv_lshlrev_b32 {x}, 16, {t}\nv_and_b32 {y}, 0xffff0000, {t}')
    def rnd1(x):
        a(f'v_cvt_pk_bf16_f32 {x}, {x}, {x}\nv_lshlrev_b32 {x}, 16, {x}')
    def unpack(lo, hi, src):
        if lo == src:
            a(f'v_and_b32 {hi}, 0xffff0000, {src}\nv_lshlrev_b32 {lo}, 16, {src}')
        else:
            a(f'v_lshlrev_b32 {lo}, 16, {src}\nv_and_b32 {hi}, 0xffff0000, {src}')
    def dpp(op, x, ctl, rm='0xf'):
        a(f'{op}_dpp {x}, {x}, {x} {ctl} row_mask:{rm} bank_mask:0xf')
    def spin_check(cnt, done, loop):
        a(f'''s_cbranch_vccz {done}
        s_add_u32 {cnt}, {cnt}, 1
        s_cmp_lt_u32 {cnt}, {SPIN}
        s_cbranch_scc1 {loop}''')
    WS = s(SRD_WS, 4)

    a(f'''
    s_cmp_ge_u32 s2, 256
    s_cbranch_scc1 L_exit
    s_load_dwordx16 s[8:23], s[0:1], 0
    s_load_dwordx8 s[24:31], s[0:1], 64
    s_load_dwordx2 s[32:33], s[0:1], 104
    ''')
    if stamps:
        for i in range(1, 12): a(f's_mov_b64 s[{72+2*i}:{73+2*i}], 0')
    stamp(0)
    a(f'''
    v_lshrrev_b32 v1, 6, v0
    v_and_b32 v0, 63, v0
    v_readfirstlane_b32 {sW}, v1
    s_and_b32 {sX}, s2, 7
    s_lshr_b32 {sY}, s2, 3
    v_lshrrev_b32 {vS}, 4, {vL}
    v_and_b32 {vN}, 15, {vL}
    s_and_b32 s6, {sY}, 1
    s_lshr_b32 s7, {sY}, 1
    s_waitcnt lgkmcnt(0)
    ''')
    sB, sC = 's6', 's7'
    srd(SRD_WS, pWS, WS_SIZE)
    a(f'''
    s_cmp_eq_u32 {sW}, 4
    s_cbranch_scc1 L_X0
    s_cmp_eq_u32 {sW}, 5
    s_cbranch_scc1 L_X1
    s_cmp_ge_u32 {sW}, 6
    s_cbranch_scc1 L_X23
    ''')

    KR = 128
    QF = 96
    a(f'''
    s_lshl_b32 s52, {sB}, 3
    s_add_u32 s52, s52, {sX}
    s_lshl_b32 s52, s52, 24
    s_lshl_b32 s53, {sC}, 17
    s_add_u32 s52, s52, s53
    s_add_u32 s52, s52, {28672*512}
    ''')
    a(f'buffer_load_dword v3, off, {WS}, 0 sc1')
    srd(SRD1, pK, 131072, 's52')
    srd(SRD2, pV, 131072, 's52')
    a(f'''
    v_lshrrev_b32 v8, 5, {vL}
    v_and_b32 v9, 31, {vL}
    v_lshlrev_b32 v10, 1, v8
    v_xor_b32 v9, v9, v10
    v_lshlrev_b32 v8, 9, v8
    v_lshl_add_u32 v4, v9, 4, v8
    v_xor_b32 v5, 64, v4
    v_xor_b32 v6, 128, v4
    v_xor_b32 v7, 192, v4
    s_add_u32 s52, {sW}, {sC}
    s_lshl_b32 s53, {sB}, 12
    s_lshl_b32 s62, {sW}, 12
    ''')
    for j in range(4):
        a(f'''
        s_add_u32 s63, s52, {4*j}
        s_and_b32 s63, s63, 15
        s_lshl_b32 s63, s63, 13
        s_add_u32 s{54+2*j}, s63, s53
        s_xor_b32 s{55+2*j}, s{54+2*j}, 4096
        ''')
    def dma_unit(j, srdr):
        for h in range(2):
            a(f's_add_u32 m0, s62, {32768*j + 16384*h}')
            for i in range(4):
                a(f'buffer_load_dwordx4 v{4+i}, {s(srdr,4)}, s{54+2*j+h} offen offset:{1024*i} nt lds')
    for j in range(4): dma_unit(j, SRD1)
    a(f'''
    v_and_b32 v12, 7, {vN}
    v_lshrrev_b32 v13, 3, {vN}
    v_lshlrev_b32 v13, 14, v13
    v_lshl_add_u32 v13, v12, 9, v13
    v_add_u32 v13, s62, v13
    v_lshlrev_b32 v12, 1, v12
    v_xor_b32 v12, v12, {vS}
    v_lshl_add_u32 v8, v12, 4, v13
    v_xor_b32 v9, 64, v8
    v_xor_b32 v10, 128, v8
    v_xor_b32 v11, 192, v8
    ''')
    stamp(1)

    def qk_block():
        a(f'''
        v_and_b32 v12, 1, {vN}
        v_lshlrev_b32 v13, 9, v12
        v_lshl_add_u32 v13, {vS}, 4, v13
        v_add_u32 v13, {L_Q}, v13
        ''')
        mask64(64, 0x0c0c0c0c0c0c0c0c); mask64(66, 0x3030303030303030); mask64(68, 0xc0c0c0c0c0c0c0c0)
        stamp(2)
        a('s_barrier')
        stamp(3)
        for t in range(8): a(f'ds_read_b128 {v(QF+4*t,4)}, v13 offset:{64*t}')
        D = 16
        for t in range(8):
            a(f's_waitcnt lgkmcnt({7-t})')
            for j in range(4):
                c = '0' if t == 0 else v(D+4*j, 4)
                a(f'v_mfma_f32_16x16x32_bf16 {v(D+4*j,4)}, {v(KR+32*j+4*t,4)}, {v(QF+4*t,4)}, {c}')
        a(f'''
        v_lshlrev_b32 v14, 6, v12
        v_add_u32 v14, {L_M}, v14
        s_lshl_b32 s63, {sW}, 4
        v_lshl_add_u32 v15, {vS}, 2, v14
        v_add_u32 v15, s63, v15
        v_bfe_u32 v32, {vN}, 1, 2
        v_lshlrev_b32 v32, 7, v32
        v_lshrrev_b32 v33, 1, {vS}
        v_lshl_add_u32 v32, v33, 6, v32
        v_and_b32 v33, 1, {vS}
        v_lshl_add_u32 v32, v33, 4, v32
        v_mul_u32_u24 v33, {PSTR}, v12
        s_lshr_b32 s63, {sW}, 1
        s_lshl_b32 s63, s63, 5
        s_and_b32 s70, {sW}, 1
        s_lshl_b32 s70, s70, 3
        s_add_u32 s63, s63, s70
        s_add_u32 s63, s63, {L_P}
        v_add3_u32 v32, v32, v33, s63
        ''')
        for j in range(1, 4):
            for r in range(4):
                a(f'v_cndmask_b32 v{D+r}, v{D+r}, v{D+4*j+r}, {s(62+2*j,2)}')
        rnd2('v16', 'v17', 'v20'); rnd2('v18', 'v19', 'v21')
        a('v_max3_f32 v20, v16, v17, v18\nv_max_f32 v20, v20, v19')
        dpp('v_max_f32', 'v20', 'row_ror:2'); dpp('v_max_f32', 'v20', 'row_ror:4')
        a('ds_write_b32 v15, v20\ns_waitcnt lgkmcnt(0)\ns_barrier')
        for i in range(4): a(f'ds_read_b128 {v(36+4*i,4)}, v14 offset:{16*i}')
        a(f's_mov_b32 s63, {hx(f2u(SC_EXP))}')
        a('s_waitcnt lgkmcnt(2)\nv_max3_f32 v20, v36, v37, v38\nv_max3_f32 v21, v39, v40, v41\nv_max3_f32 v20, v20, v42, v43')
        a('s_waitcnt lgkmcnt(0)\nv_max3_f32 v21, v21, v44, v45\nv_max3_f32 v20, v20, v46, v47\nv_max3_f32 v21, v21, v48, v49\nv_max3_f32 v20, v20, v50, v51\nv_max_f32 v20, v20, v21')
        for r in range(4): a(f'v_sub_f32 v{16+r}, v{16+r}, v20')
        for r in range(4): a(f'v_mul_f32 v{16+r}, s63, v{16+r}')
        for r in range(4): a(f'v_exp_f32 v{16+r}, v{16+r}')
        a('''
        v_add_f32 v20, v16, v17
        v_cvt_pk_bf16_f32 v22, v16, v17
        v_add_f32 v21, v18, v19
        v_cvt_pk_bf16_f32 v23, v18, v19
        v_add_f32 v20, v20, v21
        ds_write_b64 v32, v[22:23]
        ''')
        dpp('v_add_f32', 'v20', 'row_ror:2'); dpp('v_add_f32', 'v20', 'row_ror:4')
        a('ds_write_b32 v15, v20 offset:128')
        stamp(4)

    for j in range(4):
        if j == qk_pos: qk_block()
        if qk_pos >= 4:
            a('s_waitcnt vmcnt(24)')
            if j == 2: a('v_add_u32 v8, 0x10000, v8\nv_add_u32 v9, 0x10000, v9\nv_add_u32 v10, 0x10000, v10\nv_add_u32 v11, 0x10000, v11')
            for t in range(8):
                a(f'ds_read_b128 {v(KR+32*j+4*t,4)}, v{8+(t&3)} offset:{32768*(j&1) + 256*(t>>2)}')
            a('s_waitcnt lgkmcnt(0)')
        else:
            todo = {0: [0], 1: [1, 2] if qk_pos == 3 else [1, 2, 3], 2: [3] if qk_pos == 3 else [], 3: []}[j]
            for k in todo:
                a(f's_waitcnt vmcnt({8*(3-k) + 8*j})')
                if k == 2: a('v_add_u32 v8, 0x10000, v8\nv_add_u32 v9, 0x10000, v9\nv_add_u32 v10, 0x10000, v10\nv_add_u32 v11, 0x10000, v11')
                for t in range(8):
                    a(f'ds_read_b128 {v(KR+32*k+4*t,4)}, v{8+(t&3)} offset:{32768*(k&1) + 256*(t>>2)}')
                a('s_waitcnt lgkmcnt(0)')
        dma_unit(j, SRD2)
    if qk_pos >= 4: qk_block()
    a('s_waitcnt vmcnt(4) lgkmcnt(0)\ns_branch L_PV')

    a('L_X0:\ns_setprio 3')
    a(f'''
    s_mov_b32 s70, 0
    s_cmp_lt_u32 {sY}, 8
    s_cbranch_scc0 L_X0_rest
    s_cmp_lt_u32 {sX}, 7
    s_cbranch_scc0 L_XB1
    s_mov_b32 s70, 1
    s_lshl_b32 s52, {sX}, 7
    s_lshl_b32 s53, {sY}, 4
    s_add_u32 s52, s52, s53
    s_movk_i32 s53, 896
    s_branch L_X0_go
    L_X0_rest:
    s_cmp_lt_u32 {sY}, 22
    s_cbranch_scc0 L_XB1
    s_mul_i32 s52, {sX}, 448
    s_lshl_b32 s53, {sY}, 5
    s_add_u32 s52, s52, s53
    s_add_u32 s52, s52, {1792 - 256}
    s_movk_i32 s53, 16
    L_X0_go:
    ''')
    srd(SRD1, pM, 448 * 5376); srd(SRD2, pC, 1792); srd(SRD3, pX, 1792)
    def rowperm(dst, t1, t2):
        a(f'''
        v_lshrrev_b32 {dst}, 1, {vL}
        v_and_b32 {dst}, 0x13, {dst}
        v_and_b32 {t1}, 8, {vL}
        v_and_b32 {t2}, 16, {vL}
        v_lshrrev_b32 {t2}, 2, {t2}
        v_or3_b32 {dst}, {dst}, {t1}, {t2}
        ''')
    a(f'''
    v_lshlrev_b32 v4, 4, {vL}
    buffer_load_dwordx4 v[16:19], v4, {s(SRD2,4)}, 0 offen
    buffer_load_dwordx4 v[20:23], v4, {s(SRD2,4)}, 0 offen offset:1024
    v_lshrrev_b32 v5, 5, {vL}
    v_and_b32 v6, 31, {vL}
    v_mul_u32_u24 v5, 896, v5
    v_lshl_add_u32 v5, v6, 5, v5
    v_mov_b32 v7, 0x10000
    v_cmp_gt_u32 s[64:65], 28, v6
    v_cndmask_b32 v5, v7, v5, s[64:65]
    buffer_load_dwordx4 v[24:27], v5, {s(SRD3,4)}, 0 offen
    buffer_load_dwordx4 v[28:31], v5, {s(SRD3,4)}, 0 offen offset:16
    v_and_b32 v8, 1, {vN}
    v_and_b32 v9, 1, {vS}
    v_lshrrev_b32 v10, 1, {vS}
    v_lshl_add_u32 v9, v9, 1, v10
    v_mul_u32_u24 v11, 896, v8
    v_lshl_add_u32 v10, v9, 2, v11
    buffer_load_dword v32, v10, {s(SRD3,4)}, s52 offen
    buffer_load_dword v33, off, {WS}, 0 sc1
    ''')
    rowperm('v12', 'v13', 'v14')
    a(f'''
    v_mul_u32_u24 v12, 5376, v12
    v_and_b32 v13, 1, {vL}
    v_mul_u32_u24 v13, s53, v13
    v_add3_u32 v12, v12, v13, s52
    s_mov_b32 s54, 0
    ''')
    for t in range(14):
        a(f's_mov_b32 m0, {L_ST0 + 1024*t}')
        if t: a(f's_add_u32 s54, s54, {32*5376}')
        a(f'buffer_load_dwordx4 v12, {s(SRD1,4)}, s54 offen nt lds')
    a(f'''
    s_lshl_b32 s55, {sX}, 3
    s_add_u32 s55, s55, {sY}
    s_cmp_lt_u32 s55, 44
    s_cselect_b32 s56, s70, 0
    s_cmp_eq_u32 s56, 0
    s_cbranch_scc1 L_X0_noclr
    s_lshl_b32 s55, s55, 10
    s_add_u32 s55, s55, {WS_Q}
    v_mov_b32 v36, -1
    v_mov_b32 v37, -1
    v_mov_b32 v38, -1
    v_mov_b32 v39, -1
    buffer_store_dwordx4 v[36:39], v4, {WS}, s55 offen sc1
    L_X0_noclr:
    s_mov_b32 s57, {hx(f2u(-math.log2(math.e)))}
    s_waitcnt vmcnt(18)
    ''')
    stamp(1)
    for i in range(8): unpack(f'v{40+2*i}', f'v{41+2*i}', f'v{16+i}')
    for i in range(16): a(f'v_mul_f32 v{56+i}, s57, v{40+i}')
    for i in range(16): a(f'v_exp_f32 v{56+i}, v{56+i}')
    for i in range(16): a(f'v_add_f32 v{56+i}, 1.0, v{56+i}')
    for i in range(16): a(f'v_rcp_f32 v{56+i}, v{56+i}')
    for i in range(16): a(f'v_mul_f32 v{40+i}, v{40+i}, v{56+i}')
    for i in range(8): a(f'v_cvt_pk_bf16_f32 v{16+i}, v{40+2*i}, v{41+2*i}')
    a(f'''
    v_add_u32 v13, {L_SC}, v4
    ds_write_b128 v13, v[16:19]
    ds_write_b128 v13, v[20:23] offset:1024
    v_lshl_add_u32 v13, {vS}, 4, v11
    v_add_u32 v13, {L_SC}, v13
    s_waitcnt lgkmcnt(0)
    ''')
    BF = 128; AF = 192
    for t in range(14): a(f'ds_read_b128 {v(BF+4*t,4)}, v13 offset:{64*t}')
    a('s_cmp_eq_u32 s70, 0\ns_cbranch_scc1 L_X0_nostat\ns_waitcnt vmcnt(15)')
    for i in range(8): unpack(f'v{40+2*i}', f'v{41+2*i}', f'v{24+i}')
    a('''
    v_pk_add_f32 v[56:57], v[40:41], v[42:43]
    v_pk_add_f32 v[58:59], v[44:45], v[46:47]
    v_pk_add_f32 v[60:61], v[48:49], v[50:51]
    v_pk_add_f32 v[62:63], v[52:53], v[54:55]
    v_pk_add_f32 v[56:57], v[56:57], v[58:59]
    v_pk_add_f32 v[60:61], v[60:61], v[62:63]
    v_pk_add_f32 v[56:57], v[56:57], v[60:61]
    v_add_f32 v56, v56, v57
    ''')
    def red32(x):
        for k in (8, 4, 2, 1): dpp('v_add_f32', x, f'row_ror:{k}')
        dpp('v_add_f32', x, 'row_bcast:15', '0xa')
    red32('v56')
    a(f'''
    v_mul_f32 v56, {hx(f2u(1/448))}, v56
    v_cmp_gt_u32 vcc, 32, {vL}
    v_readlane_b32 s58, v56, 31
    v_readlane_b32 s59, v56, 63
    v_mov_b32 v57, s58
    v_mov_b32 v58, s59
    v_cndmask_b32 v56, v58, v57, vcc
    ''')
    for i in range(16): a(f'v_sub_f32 v{40+i}, v{40+i}, v56')
    a('v_mul_f32 v59, v40, v40\nv_mul_f32 v60, v41, v41')
    for i in range(2, 16): a(f'v_fmac_f32 v{59+(i&1)}, v{40+i}, v{40+i}')
    a('v_add_f32 v59, v59, v60\nv_cndmask_b32 v59, 0, v59, s[64:65]')
    red32('v59')
    a(f'''
    v_mul_f32 v59, {hx(f2u(1/448))}, v59
    v_cmp_eq_u32 vcc, 0, v8
    v_readlane_b32 s60, v59, 31
    v_readlane_b32 s61, v59, 63
    v_cndmask_b32 v56, v58, v57, vcc
    v_mov_b32 v57, s60
    v_mov_b32 v58, s61
    v_cndmask_b32 v57, v58, v57, vcc
    ''')
    rnd2('v56', 'v57', 'v58')
    a(f'v_add_f32 v57, {hx(f2u(1e-5))}, v57'); rnd1('v57')
    a('v_sqrt_f32 v57, v57'); rnd1('v57')
    a('v_rcp_f32 v57, v57')
    unpack('v60', 'v61', 'v32')
    a('v_sub_f32 v60, v60, v56\nv_sub_f32 v61, v61, v56'); rnd2('v60', 'v61', 'v58')
    a('v_mul_f32 v60, v60, v57\nv_mul_f32 v61, v61, v57'); rnd2('v60', 'v61', 'v58')
    a('L_X0_nostat:')
    def tr_addr(dst, t1, base):
        a(f'''
        v_lshrrev_b32 {dst}, 1, {vS}
        v_lshlrev_b32 {dst}, 9, {dst}
        v_and_b32 {t1}, 1, {vS}
        v_lshl_add_u32 {dst}, {t1}, 7, {dst}
        v_lshl_add_u32 {dst}, {vN}, 3, {dst}
        v_add_u32 {dst}, {base}, {dst}
        ''')
    def tr_reads(addr):
        for t in range(14):
            for rho in range(2):
                a(f'ds_read_b64_tr_b16 {v(AF+4*t+2*rho,2)}, {addr} offset:{1024*t + 256*rho}')
            if t == 6: a('s_waitcnt lgkmcnt(0)')
    def mm_chain(d0, d1):
        for t in range(14):
            d = d0 if t % 2 == 0 else d1
            c = '0' if t < 2 else v(d, 4)
            a(f'v_mfma_f32_16x16x32_bf16 {v(d,4)}, {v(AF+4*t,4)}, {v(BF+4*t,4)}, {c}')
        for r in range(4): a(f'v_add_f32 v{d0+r}, v{d0+r}, v{d1+r}')
    tr_addr('v14', 'v15', L_ST0)
    a('s_waitcnt vmcnt(0) lgkmcnt(0)')
    stamp(2)
    tr_reads('v14')
    a(f'v_add_u32 v33, {hx(GOLD)}, v33\ns_waitcnt lgkmcnt(0)')
    mm_chain(16, 20)
    mask64(66, 0x0003000300030003)
    a('s_cmp_eq_u32 s70, 0\ns_cbranch_scc1 L_X0_pubrest')
    rnd2('v16', 'v17', 'v24'); rnd2('v18', 'v19', 'v25')
    a('v_permlane32_swap_b32 v16, v18\nv_permlane32_swap_b32 v17, v19')
    a('v_add_f32 v18, 1.0, v18\nv_add_f32 v19, 1.0, v19'); rnd2('v18', 'v19', 'v24')
    a('v_mul_f32 v18, v18, v60\nv_mul_f32 v19, v19, v61'); rnd2('v18', 'v19', 'v24')
    a(f'''
    v_add_f32 v18, v18, v16
    v_add_f32 v19, v19, v17
    v_cvt_pk_bf16_f32 v32, v18, v19
    v_lshlrev_b32 v10, 1, v10
    s_lshl_b32 s52, s52, 1
    s_add_u32 s52, s52, {WS_H}
    s_mov_b64 exec, s[66:67]
    buffer_store_dwordx2 v[32:33], v10, {WS}, s52 offen sc1
    s_mov_b64 exec, -1
    ''')
    stamp(3)
    a(f'''
    s_branch L_XB1
    L_X0_pubrest:
    v_cvt_pk_bf16_f32 v24, v16, v17
    v_mov_b32 v25, v33
    v_cvt_pk_bf16_f32 v26, v18, v19
    v_mov_b32 v27, v33
    v_lshlrev_b32 v10, 1, v11
    v_lshl_add_u32 v10, {vS}, 4, v10
    s_lshr_b32 s52, {sX}, 1
    s_mul_i32 s52, s52, 3584
    s_and_b32 s53, {sX}, 1
    s_mul_i32 s53, s53, 896
    s_add_u32 s52, s52, s53
    s_lshl_b32 s53, {sY}, 6
    s_add_u32 s52, s52, s53
    s_add_u32 s52, s52, {WS_MR - 512}
    s_mov_b64 exec, s[66:67]
    buffer_store_dwordx4 v[24:27], v10, {WS}, s52 offen sc1
    s_mov_b64 exec, -1
    s_branch L_XB1
    ''')

    a('L_X1:\ns_setprio 2')
    srd(SRD1, pWQ, 448 * 8192)
    rowperm('v12', 'v13', 'v14')
    a(f'''
    buffer_load_dword v33, off, {WS}, 0 sc1
    v_lshlrev_b32 v12, 13, v12
    v_and_b32 v13, 1, {vL}
    v_lshl_add_u32 v12, v13, 4, v12
    s_lshl_b32 s54, {sX}, 10
    s_lshl_b32 s53, {sY}, 5
    s_add_u32 s54, s54, s53
    ''')
    for t in range(14):
        a(f's_mov_b32 m0, {L_ST1 + 1024*t}')
        if t: a(f's_add_u32 s54, s54, {32*8192}')
        a(f'buffer_load_dwordx4 v12, {s(SRD1,4)}, s54 offen nt lds')
    mask64(64, (1 << 56) - 1)
    a(f'''
    v_lshlrev_b32 v4, 4, {vL}
    v_mov_b32 v36, -1
    v_mov_b32 v37, -1
    v_mov_b32 v38, -1
    v_mov_b32 v39, -1
    s_lshl_b32 s55, {sX}, 5
    s_add_u32 s55, s55, {sY}
    s_lshl_b32 s56, s55, 10
    s_add_u32 s56, s56, {WS_A}
    buffer_store_dwordx4 v[36:39], v4, {WS}, s56 offen sc1
    s_lshl_b32 s56, s55, 4
    s_add_u32 s56, s56, {WS_ST}
    s_mov_b64 exec, 1
    buffer_store_dwordx4 v[36:39], v4, {WS}, s56 offen sc1
    s_sub_u32 s55, {sY}, 14
    s_cmp_lt_u32 s55, 14
    s_cbranch_scc0 L_X1_noC
    s_and_b32 s56, s55, 1
    s_mul_i32 s56, s56, 56
    s_lshr_b32 s55, s55, 1
    s_add_u32 s56, s56, s55
    s_mul_i32 s55, {sX}, 7
    s_add_u32 s56, s56, s55
    s_mul_i32 s56, s56, 1792
    s_add_u32 s56, s56, {WS_C}
    s_mov_b64 exec, s[64:65]
    buffer_store_dwordx4 v[36:39], v4, {WS}, s56 offen sc1
    buffer_store_dwordx4 v[36:39], v4, {WS}, s56 offen offset:896 sc1
    L_X1_noC:
    s_mov_b64 exec, -1
    ''')
    tr_addr('v14', 'v15', L_ST1)
    a(f'''
    v_and_b32 v8, 1, {vN}
    v_mul_u32_u24 v11, 896, v8
    v_lshl_add_u32 v13, {vS}, 4, v11
    v_add_u32 v13, {L_H}, v13
    v_lshlrev_b32 v5, 3, {vL}
    v_add_u32 v5, {L_H}, v5
    v_add_u32 v6, 896, v5
    s_waitcnt vmcnt(2)
    ''')
    stamp(1)
    tr_reads('v14')
    a(f'''
    v_add_u32 v33, {hx(GOLD)}, v33
    s_mov_b32 s57, 0
    s_movk_i32 s56, {WS_H}
    s_mov_b64 exec, s[64:65]
    L_X1_pollh:
    ''')
    for i in range(4): a(f'buffer_load_dwordx4 {v(16+4*i,4)}, v4, {WS}, s56 offen offset:{896*i} sc1')
    a('''
    s_waitcnt vmcnt(2)
    v_xor_b32 v40, v17, v33
    v_xor_b32 v41, v19, v33
    v_xor_b32 v42, v21, v33
    v_xor_b32 v43, v23, v33
    v_or3_b32 v40, v40, v41, v42
    s_waitcnt vmcnt(0)
    v_xor_b32 v41, v25, v33
    v_xor_b32 v42, v27, v33
    v_or3_b32 v40, v40, v41, v43
    v_xor_b32 v41, v29, v33
    v_xor_b32 v43, v31, v33
    v_or3_b32 v40, v40, v41, v42
    v_or_b32 v40, v40, v43
    v_cmp_ne_u32 vcc, 0, v40
    ''')
    spin_check('s57', 'L_X1_goth', 'L_X1_pollh')
    a('L_X1_goth:')
    stamp(2)
    a('''
    ds_write2_b32 v5, v16, v18 offset0:0 offset1:1
    ds_write2_b32 v5, v20, v22 offset0:112 offset1:113
    ds_write2_b32 v6, v24, v26 offset0:0 offset1:1
    ds_write2_b32 v6, v28, v30 offset0:112 offset1:113
    s_mov_b64 exec, -1
    s_waitcnt lgkmcnt(0)
    ''')
    for t in range(14): a(f'ds_read_b128 {v(BF+4*t,4)}, v13 offset:{64*t}')
    a(f'''
    v_lshlrev_b32 v10, 10, v8
    v_lshl_add_u32 v10, {vS}, 3, v10
    s_lshl_b32 s52, {sX}, 11
    s_add_u32 s52, s52, {WS_Q}
    s_lshl_b32 s53, {sY}, 5
    s_add_u32 s53, s53, s52
    s_lshl_b32 s55, {sB}, 10
    s_add_u32 s55, s55, s52
    s_waitcnt lgkmcnt(0)
    ''')
    mm_chain(16, 20)
    mask64(66, 0x0003000300030003)
    a(f'''
    v_cvt_pk_bf16_f32 v24, v16, v17
    v_cvt_pk_bf16_f32 v25, v18, v19
    s_mov_b64 exec, s[66:67]
    buffer_store_dwordx2 v[24:25], v10, {WS}, s53 offen sc1
    s_mov_b64 exec, -1
    s_mov_b32 s57, 0
    v_add_u32 v5, {L_Q}, v4
    ''')
    stamp(3)
    a(f'''
    L_X1_pollq:
    buffer_load_dwordx4 v[16:19], v4, {WS}, s55 offen sc1
    s_waitcnt vmcnt(0)
    v_max3_u32 v20, v16, v17, v18
    v_max_u32 v20, v20, v19
    v_cmp_eq_u32 vcc, -1, v20
    ''')
    spin_check('s57', 'L_X1_gotq', 'L_X1_pollq')
    a('L_X1_gotq:\nds_write_b128 v5, v[16:19]')
    stamp(4)
    a('s_waitcnt lgkmcnt(0)\ns_branch L_XB1')

    a('L_X23:')
    if prefetch:
        a(f'''
        s_cmp_eq_u32 {sW}, 6
        s_cbranch_scc0 L_XB1
        s_getpc_b64 s[52:53]
        L_pc:
        v_lshlrev_b32 v4, 7, {vL}
        v_min_u32 v4, L_exit-L_pc, v4
        v_mov_b32 v7, s53
        v_add_co_u32 v6, vcc, s52, v4
        v_addc_co_u32 v7, vcc, 0, v7, vcc
        global_load_dword v8, v[6:7], off
        s_waitcnt vmcnt(0)
        ''')
    WR = 64
    a(f'''
    L_XB1:
    s_setprio 0
    s_sub_u32 s71, {sW}, 4
    s_barrier
    s_barrier
    s_cmp_lt_u32 {sY}, 14
    s_cbranch_scc0 L_PV
    ''')
    srd(SRD1, pWO, 4096 * 896)
    a(f'''
    v_mul_u32_u24 v4, 3584, {vS}
    v_lshl_add_u32 v4, {vN}, 2, v4
    s_lshl_b32 s52, {sX}, 2
    s_add_u32 s52, s52, s71
    s_mul_i32 s52, s52, {128*896}
    s_lshl_b32 s53, {sY}, 6
    s_add_u32 s52, s52, s53
    ''')
    for u in range(8):
        if u: a(f's_add_u32 s52, s52, {16*896}')
        for r in range(4):
            a(f'buffer_load_dword v{WR+4*u+r}, v4, {s(SRD1,4)}, s52 offen offset:{896*r} nt')

    a('L_PV:')
    a(f'''
    v_and_b32 v12, 1, {vN}
    v_mul_u32_u24 v13, {PSTR}, v12
    v_lshl_add_u32 v13, {vS}, 4, v13
    v_add_u32 v13, {L_P}, v13
    v_and_b32 v4, 1, {vS}
    v_lshrrev_b32 v5, 2, {vN}
    v_lshl_add_u32 v4, v4, 2, v5
    v_lshrrev_b32 v5, 1, {vS}
    v_lshlrev_b32 v5, 13, v5
    v_lshl_add_u32 v5, v4, 9, v5
    v_lshl_add_u32 v5, v12, 3, v5
    v_bfe_u32 v6, {vN}, 1, 1
    s_lshl_b32 s63, {sW}, 2
    v_add_u32 v6, s63, v6
    v_lshlrev_b32 v4, 1, v4
    v_xor_b32 v6, v6, v4
    v_lshl_add_u32 v8, v6, 4, v5
    v_xor_b32 v9, 32, v8
    v_add_u32 v10, 0x10000, v8
    v_add_u32 v11, 0x10000, v9
    v_lshlrev_b32 v14, 14, v12
    v_lshrrev_b32 v5, 1, {vS}
    v_lshl_add_u32 v14, v5, 9, v14
    v_and_b32 v5, 1, {vS}
    v_lshl_add_u32 v14, v5, 4, v14
    s_lshl_b32 s58, {sX}, 15
    s_lshl_b32 s59, {sW}, 11
    s_add_u32 s58, s58, s59
    s_lshl_b32 s59, {sB}, 10
    s_add_u32 s58, s58, s59
    s_lshl_b32 s59, {sC}, 5
    s_add_u32 s58, s58, s59
    s_add_u32 s58, s58, {WS_A}
    ''')
    mask64(66, 0x0003000300030003)
    stamp(5)
    a('s_barrier')
    stamp(6)
    if stamps: a('s_waitcnt lgkmcnt(0)')
    PF = 16; VF = 96; O0 = 48; O1 = 52
    def v_reads(t, slot):
        for tau in range(2):
            for rho in range(2):
                a(f'ds_read_b64_tr_b16 {v(VF+8*slot+4*tau+2*rho,2)}, v{8+tau+2*(t>>2)} offset:{16384*(t&3) + 4096*rho}')
    def pv_mm(t, slot):
        for tau in range(2):
            o = O0 + 4 * tau
            c = '0' if t == 0 else v(o, 4)
            a(f'v_mfma_f32_16x16x32_bf16 {v(o,4)}, {v(VF+8*slot+4*tau,4)}, {v(PF+4*t,4)}, {c}')
    a(f'ds_read_b128 {v(PF,4)}, v13'); v_reads(0, 0)
    a(f'ds_read_b128 {v(PF+4,4)}, v13 offset:64'); v_reads(1, 1)
    for t in range(7):
        if t + 2 < 7:
            a(f'ds_read_b128 {v(PF+4*(t+2),4)}, v13 offset:{64*(t+2)}'); v_reads(t + 2, (t + 2) & 3)
            a('s_waitcnt lgkmcnt(10)')
        elif t + 2 == 7:
            a(f'ds_read_b128 {v(PF+28,4)}, v13 offset:448\ns_waitcnt lgkmcnt(6)')
        else:
            a('s_waitcnt lgkmcnt(0)')
        pv_mm(t, t & 3)
    a(f'''
    s_cmp_lt_u32 {sW}, 4
    s_cbranch_scc1 L_PV_s
    s_cmp_eq_u32 {sW}, 7
    s_cbranch_scc0 L_PV_b4
    v_lshlrev_b32 v4, 6, v12
    v_lshrrev_b32 v5, 1, {vN}
    v_lshl_add_u32 v4, v5, 3, v4
    v_add_u32 v4, {L_M}, v4
    ds_read_b64 v[56:57], v4
    ds_read_b64 v[58:59], v4 offset:128
    s_lshl_b32 s60, {sX}, 5
    s_lshl_b32 s61, {sB}, 4
    s_add_u32 s60, s60, s61
    s_add_u32 s60, s60, {sC}
    s_lshl_b32 s60, s60, 4
    s_add_u32 s60, s60, {WS_ST}
    v_lshlrev_b32 v5, 3, v12
    s_waitcnt lgkmcnt(0)
    v_max_f32 v56, v56, v57
    v_add_f32 v57, v58, v59
    ''')
    for k in (2, 4, 8):
        dpp('v_max_f32', 'v56', f'row_ror:{k}'); dpp('v_add_f32', 'v57', f'row_ror:{k}')
    a(f'''
    s_mov_b64 exec, 3
    buffer_store_dwordx2 v[56:57], v5, {WS}, s60 offen sc1
    s_mov_b64 exec, -1
    s_branch L_PV_b4
    L_PV_s:
    s_waitcnt vmcnt(0)
    L_PV_b4:
    ''')
    stamp(7)
    a('s_barrier')
    v_reads(7, 3)
    a('s_waitcnt lgkmcnt(2)')
    a(f'v_mfma_f32_16x16x32_bf16 {v(O0,4)}, {v(VF+24,4)}, {v(PF+28,4)}, {v(O0,4)}')
    a('s_waitcnt lgkmcnt(0)')
    a(f'v_mfma_f32_16x16x32_bf16 {v(O1,4)}, {v(VF+28,4)}, {v(PF+28,4)}, {v(O1,4)}')
    a(f'''
    s_mov_b64 exec, s[66:67]
    v_cvt_pk_bf16_f32 v56, v48, v49
    v_cvt_pk_bf16_f32 v57, v50, v51
    v_cvt_pk_bf16_f32 v58, v52, v53
    v_cvt_pk_bf16_f32 v59, v54, v55
    buffer_store_dwordx4 v[56:59], v14, {WS}, s58 offen sc1
    s_mov_b64 exec, -1
    ''')
    stamp(8)
    a(f'''
    s_cmp_lt_u32 {sY}, 14
    s_cbranch_scc0 L_notwo
    s_cmp_lt_u32 {sW}, 4
    s_cbranch_scc1 L_done
    ''')

    WF = 128
    AR = 160
    a(f'''
    s_mov_b32 s60, 0x05040100
    s_mov_b32 s61, 0x07060302
    v_and_b32 v4, 31, {vL}
    v_lshlrev_b32 v4, 4, v4
    s_lshl_b32 s52, {sX}, 9
    s_lshr_b32 s53, s71, 1
    s_lshl_b32 s53, s53, 3
    s_add_u32 s52, s52, s53
    s_add_u32 s52, s52, {WS_ST}
    v_lshrrev_b32 v5, 1, {vS}
    v_lshlrev_b32 v5, 9, v5
    v_lshl_add_u32 v5, {vN}, 5, v5
    v_and_b32 v6, 1, {vS}
    v_lshl_add_u32 v5, v6, 4, v5
    s_lshl_b32 s54, {sX}, 15
    s_lshl_b32 s55, s71, 13
    s_add_u32 s54, s54, s55
    s_add_u32 s54, s54, {WS_A}
    s_add_u32 s55, s54, 4096
    s_lshl_b32 s56, s71, 7
    s_add_u32 s56, s56, {L_W}
    v_lshrrev_b32 v6, 2, v4
    v_add_u32 v6, s56, v6
    v_lshlrev_b32 v7, 4, {vS}
    v_add_u32 v7, s56, v7
    s_mov_b32 s57, 0
    s_mov_b32 s63, {hx(f2u(SC_EXP))}
    L_WO_pollst:
    buffer_load_dwordx2 v[16:17], v4, {WS}, s52 offen sc1
    s_waitcnt vmcnt(0)
    v_max_u32 v18, v16, v17
    v_cmp_eq_u32 vcc, -1, v18
    ''')
    spin_check('s57', 'L_WO_gotst', 'L_WO_pollst')
    a('L_WO_gotst:')
    def a_loads():
        for tt in range(4):
            for b in range(2):
                k = 2 * tt + b
                a(f'buffer_load_dwordx4 {v(AR+4*k,4)}, v5, {WS}, s{54 + (k>>2)} offen offset:{1024*(k&3)} sc1')
    a_loads()
    a('v_mov_b32 v18, v16')
    for k in (1, 2, 4, 8): dpp('v_max_f32', 'v18', f'row_ror:{k}')
    a('v_sub_f32 v16, v16, v18\nv_mul_f32 v16, s63, v16\nv_exp_f32 v16, v16\nv_mul_f32 v17, v16, v17')
    for k in (1, 2, 4, 8): dpp('v_add_f32', 'v17', f'row_ror:{k}')
    a('v_rcp_f32 v17, v17\nv_mul_f32 v16, v16, v17\nds_write_b32 v6, v16')
    for tt in range(4):
        for p in range(4):
            lo = WR + 8 * tt + 2 * p
            a(f'v_perm_b32 v{WF+8*tt+p}, v{lo+1}, v{lo}, s60\nv_perm_b32 v{WF+8*tt+4+p}, v{lo+1}, v{lo}, s61')
    a(f'''
    s_waitcnt lgkmcnt(0)
    ds_read_b128 v[20:23], v7
    ds_read_b128 v[24:27], v7 offset:64
    v_lshlrev_b32 v8, 4, {vL}
    s_lshl_b32 s56, s71, 2
    s_add_u32 s56, s56, {L_RED}
    v_add_u32 v9, s56, v8
    v_add_u32 v8, {L_RED}, v8
    v_lshrrev_b32 v10, 1, {vS}
    v_mul_u32_u24 v10, 1792, v10
    v_lshl_add_u32 v10, {vN}, 3, v10
    v_and_b32 v11, 1, {vS}
    v_lshl_add_u32 v10, v11, 2, v10
    s_mul_i32 s58, {sX}, 3584
    s_lshl_b32 s59, {sY}, 7
    s_add_u32 s58, s58, s59
    s_add_u32 s58, s58, {WS_B}
    s_mov_b32 s57, 0
    s_waitcnt lgkmcnt(0)
    s_branch L_WO_first
    L_WO_poll:
    ''')
    a_loads()
    a('L_WO_first:')
    DW = 32
    for tt in range(4):
        for b in range(2):
            k = 2 * tt + b
            a(f's_waitcnt vmcnt({7-k})')
            for jj in range(2):
                d = DW + 8 * b + 4 * jj
                c = '0' if tt == 0 else v(d, 4)
                a(f'v_mfma_f32_16x16x32_bf16 {v(d,4)}, {v(AR+4*k,4)}, {v(WF+8*tt+4*jj,4)}, {c}')
    for b in range(2):
        for jj in range(2):
            d = DW + 8 * b + 4 * jj; o = 48 + 2 * b + jj
            a(f'v_mul_f32 v{o}, v{20+4*b}, v{d}')
            for r in range(1, 4): a(f'v_fmac_f32 v{o}, v{20+4*b+r}, v{d+r}')
    a('''
    v_permlane32_swap_b32 v48, v50
    v_permlane32_swap_b32 v49, v51
    v_add_f32 v48, v48, v50
    v_add_f32 v49, v49, v51
    v_permlane16_swap_b32 v48, v49
    v_add_f32 v48, v48, v49
    v_cmp_u_f32 vcc, v48, v48
    ''')
    spin_check('s57', 'L_WO_got', 'L_WO_poll')
    a('L_WO_got:\nds_write_b32 v9, v48')
    stamp(9)
    a(f'''
    s_waitcnt lgkmcnt(0)
    s_barrier
    s_cmp_eq_u32 {sW}, 4
    s_cbranch_scc0 L_done
    ds_read_b128 v[16:19], v8
    s_waitcnt lgkmcnt(0)
    v_add_f32 v16, v16, v17
    v_add_f32 v18, v18, v19
    v_add_f32 v16, v16, v18
    buffer_store_dword v16, v10, {WS}, s58 offen sc1
    ''')
    stamp(10)
    a('s_branch L_done')

    a(f'''
    L_notwo:
    s_cmp_lt_u32 {sY}, 28
    s_cbranch_scc0 L_RED
    s_sub_u32 s52, {sY}, 14
    s_lshr_b32 s52, s52, 1
    s_mul_i32 s53, {sX}, 7
    s_add_u32 s62, s52, s53
    s_cmp_ge_u32 {sW}, 4
    s_cbranch_scc1 L_FX
    s_cmp_eq_u32 {sW}, 0
    s_cbranch_scc0 L_done
    ''')
    srd(SRD1, pX, 1792)
    mask64(64, (1 << 56) - 1)
    a(f'''
    v_lshlrev_b32 v4, 4, {vL}
    v_lshlrev_b32 v5, 3, {vL}
    v_mov_b32 v6, 0x1000000
    v_cndmask_b32 v4, v6, v4, s[64:65]
    v_cndmask_b32 v7, v6, v5, s[64:65]
    s_mul_i32 s52, {sB}, 896
    buffer_load_dwordx2 v[8:9], v7, {s(SRD1,4)}, s52 offen
    buffer_load_dwordx2 v[10:11], v7, {s(SRD1,4)}, s52 offen offset:448
    s_mul_i32 s52, {sB}, 1792
    s_add_u32 s53, s52, {WS_MR}
    s_add_u32 s54, s53, 3584
    s_add_u32 s55, s53, 7168
    s_add_u32 s56, s52, {WS_B}
    v_add_u32 v5, {L_H2}, v5
    v_mov_b32 v12, 0
    v_mov_b32 v13, 0
    ds_write_b64 v5, v[12:13] offset:512
    v_add_u32 v33, {hx(GOLD)}, v3
    s_mov_b32 s57, 0
    L_LN_pollm:
    ''')
    for k in range(3):
        for hf in range(2):
            a(f'buffer_load_dwordx4 {v(64+8*k+4*hf,4)}, v4, {WS}, s{53+k} offen offset:{896*hf} sc1')
    a('s_waitcnt vmcnt(0)\nv_mov_b32 v40, 0')
    for k in range(6):
        a(f'v_xor_b32 v41, v{65+4*k}, v33\nv_xor_b32 v42, v{67+4*k}, v33\nv_or3_b32 v40, v40, v41, v42')
    a('v_cmp_ne_u32 vcc, 0, v40\ns_and_b64 vcc, vcc, s[64:65]')
    spin_check('s57', 'L_LN_gotm', 'L_LN_pollm')
    a('L_LN_gotm:')
    XF, GA, SB, C1 = 16, 64, 72, 80
    for i in range(4): unpack(f'v{XF+2*i}', f'v{XF+1+2*i}', f'v{8+i}')
    for k in range(12): unpack(f'v{64+2*k}', f'v{65+2*k}', f'v{64+2*k}')
    for i in range(8): a(f'v_add_f32 v{C1+i}, 1.0, v{C1+i}')
    for i in range(4): rnd2(f'v{C1+2*i}', f'v{C1+1+2*i}', 'v40')
    BR = 128
    a('s_mov_b32 s57, 0\nL_LN_poll:\ns_mov_b32 s58, s56')
    for k in range(8):
        if k: a('s_add_u32 s58, s58, 3584')
        for hf in range(2):
            a(f'buffer_load_dwordx4 {v(BR+8*k+4*hf,4)}, v4, {WS}, s58 offen offset:{896*hf} sc1')
    AC = 24
    def pk(op, d, x, y, z=None):
        for i in range(4):
            a(f'{op} {v(d+2*i,2)}, {v(x+2*i,2)}, {v(y+2*i,2)}' + (f', {v(z+2*i,2)}' if z is not None else ''))
    def rnd8(x):
        if rnd_tail:
            for i in range(4): a(f'v_cvt_pk_bf16_f32 v{40+i}, v{x+2*i}, v{x+1+2*i}')
            for i in range(4): unpack(f'v{x+2*i}', f'v{x+1+2*i}', f'v{40+i}')
    for k in range(1, 8):
        a(f's_waitcnt vmcnt({14-2*k})')
        pk('v_pk_add_f32', AC, BR if k == 1 else AC, BR + 8 * k)
    if rnd_tail:
        rnd8(AC); pk('v_pk_mul_f32', AC, AC, GA); rnd8(AC); pk('v_pk_add_f32', AC, AC, XF); rnd8(AC)
    else:
        pk('v_pk_fma_f32', AC, AC, GA, XF)
    a(f'''
    v_pk_add_f32 v[44:45], {v(AC,2)}, {v(AC+2,2)}
    v_pk_add_f32 v[46:47], {v(AC+4,2)}, {v(AC+6,2)}
    v_pk_add_f32 v[44:45], v[44:45], v[46:47]
    v_add_f32 v44, v44, v45
    v_cmp_u_f32 vcc, v44, v44
    ''')
    spin_check('s57', 'L_LN_got', 'L_LN_poll')
    a('L_LN_got:')
    stamp(9)
    def red64(x):
        for k in (8, 4, 2, 1): dpp('v_add_f32', x, f'row_ror:{k}')
        dpp('v_add_f32', x, 'row_bcast:15', '0xa'); dpp('v_add_f32', x, 'row_bcast:31', '0xc')
    red64('v44')
    a(f'v_mul_f32 v44, {hx(f2u(1/448))}, v44\nv_readlane_b32 s58, v44, 63')
    for i in range(8): a(f'v_subrev_f32 v{48+i}, s58, v{AC+i}')
    a('v_pk_mul_f32 v[46:47], v[48:49], v[48:49]')
    for i in range(1, 4): a(f'v_pk_fma_f32 v[46:47], {v(48+2*i,2)}, {v(48+2*i,2)}, v[46:47]')
    a('v_add_f32 v46, v46, v47\nv_cndmask_b32 v46, 0, v46, s[64:65]')
    red64('v46')
    a(f'v_mul_f32 v46, {hx(f2u(1/448))}, v46')
    if rnd_tail:
        rnd2('v44', 'v46', 'v40')
        a(f'v_add_f32 v46, {hx(f2u(1e-5))}, v46\nv_readlane_b32 s58, v44, 63'); rnd1('v46')
        a('v_sqrt_f32 v46, v46'); rnd1('v46')
        a('v_rcp_f32 v46, v46')
        for i in range(8): a(f'v_subrev_f32 v{48+i}, s58, v{AC+i}')
        a('v_readlane_b32 s59, v46, 63')
        rnd8(48)
        for i in range(8): a(f'v_mul_f32 v{48+i}, s59, v{48+i}')
        rnd8(48); pk('v_pk_mul_f32', 48, 48, C1); rnd8(48); pk('v_pk_add_f32', 48, 48, SB)
    else:
        a(f'v_add_f32 v46, {hx(f2u(1e-5))}, v46\nv_rsq_f32 v46, v46')
        pk('v_pk_mul_f32', 48, 48, C1)
        a('v_readlane_b32 s59, v46, 63')
        for i in range(8): a(f'v_fma_f32 v{48+i}, v{48+i}, s59, v{SB+i}')
    for i in range(4): a(f'v_cvt_pk_bf16_f32 v{40+i}, v{48+2*i}, v{49+2*i}')
    a('''
    s_mov_b64 exec, s[64:65]
    ds_write_b64 v5, v[40:41]
    ds_write_b64 v5, v[42:43] offset:448
    s_waitcnt lgkmcnt(0)
    s_mov_b64 exec, -1
    ''')
    stamp(10)
    a('s_barrier\ns_branch L_done')

    a('L_FX:')
    srd(SRD1, pG, 448 * 3584); srd(SRD2, pU, 448 * 3584); srd(SRD3, pD, 1792 * 896)
    GR, UR, DR = 64, 96, 192
    GF, UF, DF = 128, 160, 224
    a(f'''
    v_mul_u32_u24 v4, {8*3584}, {vS}
    v_lshl_add_u32 v4, {vN}, 2, v4
    s_mul_i32 s52, s71, {128*3584}
    s_lshl_b32 s53, s62, 6
    s_add_u32 s52, s52, s53
    v_mul_u32_u24 v5, {8*896}, {vS}
    v_lshl_add_u32 v5, {vN}, 4, v5
    s_mul_i32 s54, s62, {32*896}
    s_mul_i32 s55, s71, 224
    s_add_u32 s54, s54, s55
    s_add_u32 s55, s54, 3584
    s_mov_b32 s60, 0x05040100
    s_mov_b32 s61, 0x07060302
    ''')
    for tt in range(4):
        for i2 in range(4):
            if tt or i2: a(f's_add_u32 s52, s52, {2*3584 if i2 else 26*3584}')
            for e in range(2):
                a(f'buffer_load_dword v{GR+8*tt+2*i2+e}, v4, {s(SRD1,4)}, s52 offen offset:{3584*e} nt')
            for e in range(2):
                a(f'buffer_load_dword v{UR+8*tt+2*i2+e}, v4, {s(SRD2,4)}, s52 offen offset:{3584*e} nt')
    for i in range(8):
        a(f'buffer_load_dwordx4 {v(DR+4*i,4)}, v5, {s(SRD3,4)}, s{54+(i>>2)} offen offset:{896*(i&3)} nt')
    a(f'''
    s_lshl_b32 s56, s71, 8
    s_add_u32 s56, s56, {L_H2}
    v_lshlrev_b32 v6, 4, {vS}
    v_add_u32 v6, s56, v6
    v_lshlrev_b32 v7, 4, {vL}
    s_lshl_b32 s56, s71, 2
    s_add_u32 s56, s56, {L_RED}
    v_add_u32 v7, s56, v7
    v_and_b32 v8, 1, {vN}
    v_lshlrev_b32 v8, 4, v8
    v_lshl_add_u32 v8, {vS}, 2, v8
    v_bfe_u32 v9, {vN}, 1, 2
    v_add_u32 v8, v8, v9
    v_lshlrev_b32 v8, 4, v8
    v_add_u32 v8, {L_RED}, v8
    v_lshlrev_b32 v10, 5, {vN}
    v_lshl_add_u32 v10, {vS}, 3, v10
    s_mul_i32 s58, {sB}, 56
    s_add_u32 s58, s58, s62
    s_mul_i32 s58, s58, 1792
    s_mul_i32 s59, s71, 448
    s_add_u32 s58, s58, s59
    s_add_u32 s58, s58, {WS_C}
    s_mov_b32 s57, {hx(f2u(-math.log2(math.e)))}
    ''')
    mask64(64, 0xffff0000ffff0000); mask64(66, 0xffffffff00000000); mask64(68, 0x00003fff00003fff)
    for tt in range(4):
        a(f's_waitcnt vmcnt({8 + 16*(3-tt)})')
        for (R, F) in ((GR, GF), (UR, UF)):
            for p in range(4):
                lo = R + 8 * tt + 2 * p
                a(f'v_perm_b32 v{F+8*tt+p}, v{lo+1}, v{lo}, s60\nv_perm_b32 v{F+8*tt+4+p}, v{lo+1}, v{lo}, s61')
    a('s_waitcnt vmcnt(0)')
    for q in range(4):
        for p in range(4):
            lo = DR + 8 * p + q
            a(f'v_perm_b32 v{DF+8*q+p}, v{lo+4}, v{lo}, s60\nv_perm_b32 v{DF+8*q+4+p}, v{lo+4}, v{lo}, s61')
    stamp(9)
    a('s_barrier')
    for tt in range(4): a(f'ds_read_b128 {v(16+4*tt,4)}, v6 offset:{64*tt}')
    for tt in range(4):
        a(f's_waitcnt lgkmcnt({3-tt})')
        for tau, F in enumerate((GF, GF + 4, UF, UF + 4)):
            d = 32 + 4 * tau
            c = '0' if tt == 0 else v(d, 4)
            a(f'v_mfma_f32_16x16x32_bf16 {v(d,4)}, {v(16+4*tt,4)}, {v(F+8*tt,4)}, {c}')
    a('''
    v_cndmask_b32 v48, v32, v36, s[64:65]
    v_cndmask_b32 v49, v40, v44, s[64:65]
    v_cndmask_b32 v48, v48, v49, s[66:67]
    ds_write_b32 v7, v48
    s_waitcnt lgkmcnt(0)
    s_barrier
    ds_read_b128 v[16:19], v8
    ds_read_b128 v[20:23], v8 offset:512
    s_waitcnt lgkmcnt(1)
    v_add_f32 v16, v16, v17
    v_add_f32 v18, v18, v19
    v_add_f32 v16, v16, v18
    s_waitcnt lgkmcnt(0)
    v_add_f32 v20, v20, v21
    v_add_f32 v22, v22, v23
    v_add_f32 v20, v20, v22
    ''')
    if rnd_tail: rnd2('v16', 'v20', 'v24')
    a('''
    v_mul_f32 v17, s57, v16
    v_exp_f32 v17, v17
    v_add_f32 v17, 1.0, v17
    v_rcp_f32 v17, v17
    v_mul_f32 v16, v16, v17
    ''')
    if rnd_tail: rnd1('v16')
    a('''
    v_mul_f32 v16, v16, v20
    v_mov_b32_dpp v17, v16 row_ror:15 row_mask:0xf bank_mask:0xf
    v_cvt_pk_bf16_f32 v24, v16, v17
    v_mov_b32_dpp v25, v24 row_ror:14 row_mask:0xf bank_mask:0xf
    v_mov_b32_dpp v26, v24 row_ror:12 row_mask:0xf bank_mask:0xf
    v_mov_b32_dpp v27, v24 row_ror:10 row_mask:0xf bank_mask:0xf
    ''')
    for j in (0, 4, 1, 5, 2, 6, 3, 7):
        a(f'v_mfma_f32_16x16x32_bf16 {v(64+4*j,4)}, v[24:27], {v(DF+4*j,4)}, 0')
    for r in range(4): a(f'v_cndmask_b32 v{16+r}, v{64+4*r}, v{80+4*r}, s[66:67]')
    a(f'''
    s_mov_b64 exec, s[68:69]
    buffer_store_dwordx4 v[16:19], v10, {WS}, s58 offen sc1
    s_mov_b64 exec, -1
    ''')
    stamp(10)
    a('s_branch L_done')

    a(f'''
    L_RED:
    s_sub_u32 s62, s2, 224
    s_cmp_lt_u32 s62, 28
    s_cbranch_scc0 L_done
    s_cmp_eq_u32 {sW}, 0
    s_cbranch_scc0 L_done
    s_cmp_ge_u32 s62, 14
    s_cselect_b32 s52, 1, 0
    s_mul_i32 s53, s52, 14
    s_sub_u32 s53, s62, s53
    ''')
    srd(SRD1, pX, 1792); srd(SRD2, pO, 1792)
    a(f'''
    v_and_b32 v4, 7, {vL}
    v_lshl_add_u32 v5, v4, 2, {vS}
    v_lshlrev_b32 v5, 1, v5
    s_lshl_b32 s54, s62, 6
    buffer_load_ushort v16, v5, {s(SRD1,4)}, s54 offen
    v_lshrrev_b32 v6, 1, {vS}
    v_lshl_add_u32 v6, v4, 1, v6
    v_lshlrev_b32 v6, 3, v6
    s_lshl_b32 s55, s62, 7
    s_add_u32 s56, s55, {WS_MR}
    s_add_u32 s58, s56, {3*3584}
    v_lshrrev_b32 v7, 3, {vL}
    v_mul_u32_u24 v8, 3584, v7
    v_lshl_add_u32 v8, v4, 4, v8
    v_mul_u32_u24 v9, 1792, v7
    v_lshl_add_u32 v9, v4, 4, v9
    s_add_u32 s59, s55, {WS_B}
    s_mul_i32 s60, s52, {56*1792}
    s_lshl_b32 s61, s53, 7
    s_add_u32 s60, s60, s61
    s_add_u32 s60, s60, {WS_C}
    v_add_u32 v33, {hx(GOLD)}, v3
    s_mov_b32 s57, 0
    L_RED_pollm:
    buffer_load_dwordx2 v[18:19], v6, {WS}, s56 offen sc1
    buffer_load_dwordx2 v[20:21], v6, {WS}, s58 offen sc1
    s_waitcnt vmcnt(0)
    v_xor_b32 v22, v19, v33
    v_xor_b32 v23, v21, v33
    v_or_b32 v22, v22, v23
    v_cmp_ne_u32 vcc, 0, v22
    ''')
    spin_check('s57', 'L_RED_gotm', 'L_RED_pollm')
    a('L_RED_gotm:')
    mask64(64, 0xffff0000ffff0000); mask64(66, 0x00ff00ff00ff00ff)
    a('v_lshlrev_b32 v16, 16, v16')
    unpack('v18', 'v19', 'v18'); unpack('v20', 'v21', 'v20')
    a('v_cndmask_b32 v18, v18, v19, s[64:65]\nv_cndmask_b32 v20, v20, v21, s[64:65]')
    def red_p(x):
        a(f'''
        v_permlane32_swap_b32 v{x}, v{x+2}
        v_permlane32_swap_b32 v{x+1}, v{x+3}
        v_add_f32 v{x}, v{x}, v{x+2}
        v_add_f32 v{x+1}, v{x+1}, v{x+3}
        v_permlane16_swap_b32 v{x}, v{x+1}
        v_add_f32 v{x}, v{x}, v{x+1}
        ''')
        dpp('v_add_f32', f'v{x}', 'row_ror:8')
    a(f'''
    s_mov_b32 s57, 0
    L_RED_pollb:
    buffer_load_dwordx4 v[24:27], v8, {WS}, s59 offen sc1
    s_waitcnt vmcnt(0)
    ''')
    red_p(24)
    a('v_cmp_u_f32 vcc, v24, v24')
    spin_check('s57', 'L_RED_gotb', 'L_RED_pollb')
    a('L_RED_gotb:')
    stamp(9)
    if rnd_tail:
        rnd1('v24'); a('v_mul_f32 v24, v24, v18'); rnd1('v24'); a('v_add_f32 v16, v16, v24'); rnd1('v16')
    else:
        a('v_fmac_f32 v16, v24, v18')
    a('s_mov_b32 s57, 0\nL_RED_pollc:\ns_mov_b32 s61, s60')
    for i in range(7):
        if i: a(f's_add_u32 s61, s61, {8*1792}')
        a(f'buffer_load_dwordx4 {v(64+4*i,4)}, v9, {WS}, s61 offen sc1')
    for i in range(1, 7):
        a(f's_waitcnt vmcnt({6-i})')
        src = 64 if i == 1 else 24
        a(f'v_pk_add_f32 v[24:25], {v(src,2)}, {v(64+4*i,2)}\nv_pk_add_f32 v[26:27], {v(src+2,2)}, {v(66+4*i,2)}')
    red_p(24)
    a('v_cmp_u_f32 vcc, v24, v24')
    spin_check('s57', 'L_RED_gotc', 'L_RED_pollc')
    a('L_RED_gotc:')
    if rnd_tail:
        rnd1('v24'); a('v_mul_f32 v24, v24, v20'); rnd1('v24'); a('v_add_f32 v16, v16, v24')
    else:
        a('v_fmac_f32 v16, v24, v20')
    a(f'''
    v_cvt_pk_bf16_f32 v16, v16, v16
    s_mov_b64 exec, s[66:67]
    buffer_store_short v16, v5, {s(SRD2,4)}, s54 offen
    s_mov_b64 exec, -1
    ''')
    stamp(10)
    a(f'''
    s_cmp_eq_u32 s62, 0
    s_cbranch_scc0 L_done
    s_mov_b64 exec, 1
    buffer_store_dword v33, off, {WS}, 0 sc1
    s_mov_b64 exec, -1
    L_done:
    ''')
    if stamps:
        stamp(11)
        a(f'''
        s_waitcnt lgkmcnt(0)
        s_add_u32 s34, s{pWS}, {512<<20}
        s_addc_u32 s35, s{pWS+1}, 0
        s_lshl_b32 s52, s2, 3
        s_add_u32 s52, s52, {sW}
        s_lshl_b32 s52, s52, 7
        s_mov_b64 exec, 1
        v_mov_b32 v4, s52
        ''')
        for i in range(12):
            a(f'v_mov_b32 v{6+2*i}, s{72+2*i}\nv_mov_b32 v{7+2*i}, s{73+2*i}\nglobal_store_dwordx2 v4, v[{6+2*i}:{7+2*i}], s[34:35] offset:{8*i}')
    a('L_exit:\ns_endpgm')
    lines, added = fix(a.lines)
    return '\n'.join(lines) + '\n'

HEADER = ''.join(l for l in open('adaLN_cond__sliding_block_cached__swiglu_ffn__decode.s.ref').readlines() if l.startswith(';') and '@launch' not in l) if __import__('os').path.exists('adaLN_cond__sliding_block_cached__swiglu_ffn__decode.s.ref') else ''

def write(path, **kw):
    open(path, 'w').write(wrap(gen(**kw), 256, 512, 163840, 256, 256, 102, header=HEADER))

if __name__ == '__main__':
    write('k_main.s')
    write('k_main_st.s', stamps=True)
```
